```python
import torch

def _softmax(x, axis=-1):
    return torch.softmax(x, dim=axis)
def _gelu(x):
    return torch.nn.functional.gelu(x, approximate="tanh")
def _silu(x):
    return torch.nn.functional.silu(x)
def _sigmoid(x):
    return torch.sigmoid(x)
def _layernorm(x, axis=-1, eps=1e-5):
    m = x.mean(dim=axis, keepdim=True)
    v = x.var(dim=axis, keepdim=True, unbiased=False)
    return (x - m) / torch.sqrt(v + eps)
def _scatter_add(tgt, idx, src, axis=0):
    return tgt.clone().index_add_(axis, idx, src)
def _segment_sum(src, seg, n):
    out = torch.zeros((n,) + src.shape[1:], dtype=src.dtype)
    return out.index_add_(0, seg, src)
def _pad(x, pw):
    flat = tuple(v for pair in reversed(pw) for v in pair)
    return torch.nn.functional.pad(x, flat)

kernel_name = 'standalone__softmax_full_bidir__decode'

def setup_inputs():

    _w = (lambda a: (lambda t: t.to(torch.bfloat16) if t.is_floating_point() else t)(torch.as_tensor(a)))
    B, H, Sq, Skv, Dh = 1, 32, 1, 4096, 128
    return {
        "q": _w((lambda *s: torch.randn(*s, dtype=torch.bfloat16) * 0.8)(B, H, Sq, Dh)),
        "k": _w((lambda *s: torch.randn(*s, dtype=torch.bfloat16) * 0.8)(B, H, Skv, Dh)),
        "v": _w((lambda *s: torch.randn(*s, dtype=torch.bfloat16) * 0.05)(B, H, Skv, Dh)),
    }

def reference(q, k, v):
    scale = q.shape[-1] ** -0.5
    scores = torch.einsum('bhqd,bhkd->bhqk', q, k) * scale
    attn = _softmax(scores, axis=-1)
    return torch.einsum('bhqk,bhkd->bhqd', attn, v)
```

```python
import sys, math, struct

NAME = "standalone__softmax_full_bidir__decode"
HEADER = open("cdna_kernels/%s.s.ref" % NAME).read().split("; @launch")[0]

def f32bits(x):
    return struct.unpack("<I", struct.pack("<f", x))[0]

def gen(nt=True):
    L = []
    e = L.append
    NT = " nt" if nt else ""
    C = (128 ** -0.5) * math.log2(math.e)
    e(HEADER.rstrip("\n"))
    e("; @launch grid=(256,1,1) block=(1024,1,1) lds=8448")
    e('.amdgcn_target "amdgcn-amd-amdhsa--gfx950"')
    e(".text")
    e(".globl %s_kernel" % NAME)
    e(".p2align 8")
    e(".type %s_kernel,@function" % NAME)
    e("%s_kernel:" % NAME)
    e("  s_cmp_ge_u32 s2, 0x100")
    e("  s_cbranch_scc1 L_end")
    e("  s_load_dwordx8 s[4:11], s[0:1], 0      ; q k v out")
    e("  s_load_dwordx4 s[12:15], s[0:1], 32")
    e("  s_and_b32 s16, s2, 31                  ; h")
    e("  s_lshr_b32 s17, s2, 5                  ; split")
    e("  s_lshl_b32 s18, s16, 20")
    e("  s_lshl_b32 s19, s17, 17")
    e("  s_add_u32 s18, s18, s19")
    e("  s_add_u32 s18, s18, 0x1000             ; h*1M + split*128K + 4096")
    e("  v_and_b32 v11, 63, v0                  ; lane")
    e("  v_lshrrev_b32 v12, 6, v0               ; wave")
    e("  v_lshl_add_u32 v13, v12, 13, s18       ; base")
    e("  v_lshlrev_b32 v7, 4, v11               ; lane*16")
    e("  v_add_u32 v3, v13, v7                  ; vV")
    e("  v_bfe_u32 v14, v0, 2, 2")
    e("  v_bfe_u32 v15, v0, 4, 2")
    e("  v_and_b32 v1, 3, v0")
    e("  v_lshlrev_b32 v1, 4, v1")
    e("  v_lshl_add_u32 v1, v15, 6, v1")
    e("  v_lshl_add_u32 v1, v14, 8, v1          ; vL")
    e("  v_add_u32 v2, v13, v1                  ; vK")
    e("  v_subrev_u32 v4, 0x100, v1")
    e("  v_subrev_u32 v5, 0x200, v1")
    e("  v_subrev_u32 v6, 0x300, v1")
    e("  s_lshl_b32 s19, s16, 8                 ; h*256")
    e("  s_mov_b32 s22, 0x100")
    e("  s_mov_b32 s23, 0x20000")
    e("  s_waitcnt lgkmcnt(0)")
    for n in range(8):
        e("  global_load_dwordx4 v[%d:%d], v2, s[6:7] offset:%d%s" % (32 + 4 * n, 35 + 4 * n, -4096 + 1024 * n, NT))
    e("  s_add_u32 s20, s4, s19")
    e("  s_addc_u32 s21, s5, 0")
    for n, vo in enumerate((1, 4, 5, 6)):
        e("  buffer_load_dwordx4 v[%d:%d], v%d, s[20:23], 0 offen" % (16 + 4 * n, 19 + 4 * n, vo))
    for n in range(8):
        e("  global_load_dwordx4 v[%d:%d], v3, s[8:9] offset:%d%s" % (64 + 4 * n, 67 + 4 * n, -4096 + 1024 * n, NT))
    e("  v_mov_b64 v[104:105], 0")
    e("  v_mov_b64 v[106:107], 0")
    e("  v_mov_b32 v10, 0x%08x" % f32bits(C))
    e("  v_and_b32 v14, 2, v0")
    e("  v_cmp_ne_u32 vcc, 0, v14")
    e("  v_mov_b32 v15, 0xffff0000")
    e("  v_and_b32 v14, 1, v0")
    e("  v_cndmask_b32 v8, 0, v15, vcc          ; selmask")
    e("  v_cmp_ne_u32 vcc, 0, v14")
    e("  v_mov_b32 v15, 0x03020c0c")
    e("  v_mov_b32 v14, 0x0c0c0302")
    e("  v_cndmask_b32 v9, v14, v15, vcc")
    e("  v_lshlrev_b32 v13, 3, v0")
    e("  v_lshlrev_b32 v12, 3, v12              ; wave*8")
    e("  s_waitcnt vmcnt(8)")
    for n in range(4):
        for (D, base) in ((96, 0), (100, 4)):
            k = 32 + 4 * (base + n)
            e("  v_mfma_f32_16x16x32_bf16 v[%d:%d], v[%d:%d], v[%d:%d], %s" % (
                D, D + 3, k, k + 3, 16 + 4 * n, 19 + 4 * n, "0" if n == 0 else "v[%d:%d]" % (D, D + 3)))
    e("  s_nop 7")
    FM = " row_mask:0xf bank_mask:0xf"
    e("  v_add_f32_dpp v112, v96, v97 quad_perm:[0,0,0,0]" + FM)
    e("  v_add_f32_dpp v113, v98, v99 quad_perm:[2,2,2,2]" + FM)
    e("  v_add_f32_dpp v114, v100, v101 quad_perm:[0,0,0,0]" + FM)
    e("  v_add_f32_dpp v115, v102, v103 quad_perm:[2,2,2,2]" + FM)
    e("  s_nop 0")
    e("  v_add_f32_dpp v112, v112, v113 quad_perm:[1,1,1,1]" + FM)
    e("  v_add_f32_dpp v114, v114, v115 quad_perm:[1,1,1,1]" + FM)
    e("  s_nop 0")
    e("  v_mul_f32_dpp v116, v112, v10 quad_perm:[3,3,3,3]" + FM)
    e("  v_mul_f32_dpp v117, v114, v10 quad_perm:[3,3,3,3]" + FM)
    e("  v_max_f32 v118, v116, v117")
    e("  s_nop 1")
    e("  v_max_f32_dpp v118, v118, v118 row_ror:4" + FM)
    e("  s_nop 1")
    e("  v_max_f32_dpp v118, v118, v118 row_ror:8" + FM)
    e("  s_nop 1")
    e("  v_max_f32_dpp v118, v118, v118 row_bcast:15 row_mask:0xa bank_mask:0xf")
    e("  s_nop 1")
    e("  v_max_f32_dpp v118, v118, v118 row_bcast:31 row_mask:0xc bank_mask:0xf")
    e("  s_nop 0")
    e("  v_readlane_b32 s24, v118, 63")
    e("  s_nop 1")
    e("  v_subrev_f32 v116, s24, v116")
    e("  v_subrev_f32 v117, s24, v117")
    e("  v_exp_f32 v116, v116                   ; pa")
    e("  v_exp_f32 v117, v117                   ; pb")
    e("  v_mov_b32 v120, s24                    ; m")
    e("  v_and_b32 v112, v116, v8")
    e("  v_add_f32 v121, v116, v117             ; l partial")
    e("  v_and_b32 v113, v117, v8")
    e("  v_sub_f32 v112, v116, v112")
    e("  v_add_f32_dpp v121, v121, v121 row_ror:4" + FM)
    e("  v_sub_f32 v113, v117, v113")
    e("  v_perm_b32 v114, v112, v112, v9        ; Wa")
    e("  v_add_f32_dpp v121, v121, v121 row_ror:8" + FM)
    e("  v_perm_b32 v115, v113, v113, v9        ; Wb")
    e("  s_nop 0")
    e("  v_add_f32_dpp v121, v121, v121 row_bcast:15 row_mask:0xa bank_mask:0xf")
    e("  s_nop 1")
    e("  v_add_f32_dpp v121, v121, v121 row_bcast:31 row_mask:0xc bank_mask:0xf")
    e("  s_lshl_b64 exec, 1, 63")
    e("  ds_write_b64 v12, v[120:121] offset:8192")
    e("  s_mov_b64 exec, -1")
    for n in range(8):
        W = 114 if n < 4 else 115
        nn = n & 3
        for r in range(4):
            k = (4 * (r - nn)) % 16
            ctrl = "quad_perm:[0,1,2,3]" if k == 0 else "row_ror:%d" % k
            e("  v_mov_b32_dpp v%d, v%d %s row_mask:0xf bank_mask:0x%x" % (104 + r, W, ctrl, 1 << r))
        e("  s_waitcnt vmcnt(%d)" % (7 - n))
        e("  s_nop 0")
        e("  v_mfma_f32_16x16x32_bf16 v[108:111], v[104:107], v[%d:%d], %s" % (
            64 + 4 * n, 67 + 4 * n, "0" if n == 0 else "v[108:111]"))
    e("  s_nop 7")
    e("  v_pk_add_f32 v[108:109], v[108:109], v[110:111]")
    e("  ds_write_b64 v13, v[108:109]")
    e("  v_readfirstlane_b32 s25, v0")
    e("  s_waitcnt lgkmcnt(0)")
    e("  s_barrier")
    e("  s_cmp_ge_u32 s25, 64")
    e("  s_cbranch_scc1 L_end")
    e("  v_and_b32 v14, 15, v0")
    e("  v_lshlrev_b32 v14, 3, v14")
    e("  ds_read_b64 v[120:121], v14 offset:8192")
    for t in range(8):
        e("  ds_read2st64_b64 v[%d:%d], v13 offset0:%d offset1:%d" % (32 + 4 * t, 35 + 4 * t, 2 * t, 2 * t + 1))
    e("  s_lshl_b32 s26, s16, 13                ; h*8192")
    e("  s_lshl_b32 s27, s17, 10                ; split*1024")
    e("  s_add_u32 s26, s26, 0x1000")
    e("  v_add_u32 v15, s26, v7")
    e("  v_add_u32 v11, s27, v15")
    e("  s_waitcnt lgkmcnt(8)")
    e("  v_max_f32_dpp v110, v120, v120 row_ror:1" + FM)
    e("  s_nop 1")
    e("  v_max_f32_dpp v110, v110, v110 row_ror:2" + FM)
    e("  s_nop 1")
    e("  v_max_f32_dpp v110, v110, v110 row_ror:4" + FM)
    e("  s_nop 1")
    e("  v_max_f32_dpp v110, v110, v110 row_ror:8" + FM)
    e("  v_sub_f32 v120, v120, v110")
    e("  v_exp_f32 v120, v120                   ; sc")
    e("  s_nop 0")
    e("  v_mul_f32 v111, v120, v121")
    e("  s_waitcnt lgkmcnt(0)")
    e("  v_mul_f32_dpp v108, v120, v32 row_newbcast:0" + FM)
    e("  v_add_f32_dpp v111, v111, v111 row_ror:1" + FM)
    e("  v_mul_f32_dpp v109, v120, v33 row_newbcast:0" + FM)
    e("  v_mul_f32_dpp v112, v120, v34 row_newbcast:1" + FM)
    e("  v_add_f32_dpp v111, v111, v111 row_ror:2" + FM)
    e("  v_mul_f32_dpp v113, v120, v35 row_newbcast:1" + FM)
    e("  v_fmac_f32_dpp v108, v120, v36 row_newbcast:2" + FM)
    e("  v_add_f32_dpp v111, v111, v111 row_ror:4" + FM)
    e("  v_fmac_f32_dpp v109, v120, v37 row_newbcast:2" + FM)
    e("  v_fmac_f32_dpp v112, v120, v38 row_newbcast:3" + FM)
    e("  v_add_f32_dpp v111, v111, v111 row_ror:8" + FM)
    e("  v_fmac_f32_dpp v113, v120, v39 row_newbcast:3" + FM)
    for w in range(4, 16, 2):
        e("  v_fmac_f32_dpp v108, v120, v%d row_newbcast:%d" % (32 + 2 * w, w) + FM)
        e("  v_fmac_f32_dpp v109, v120, v%d row_newbcast:%d" % (33 + 2 * w, w) + FM)
        e("  v_fmac_f32_dpp v112, v120, v%d row_newbcast:%d" % (34 + 2 * w, w + 1) + FM)
        e("  v_fmac_f32_dpp v113, v120, v%d row_newbcast:%d" % (35 + 2 * w, w + 1) + FM)
    e("  v_pk_add_f32 v[108:109], v[108:109], v[112:113]")
    e("  global_store_dwordx4 v11, v[108:111], s[14:15] offset:-4096 sc0 sc1")
    e("  s_lshl_b32 s28, s16, 2")
    e("  v_mov_b32 v1, s28")
    e("  v_mov_b32 v2, 1")
    e("  s_mov_b64 exec, 1")
    e("  s_waitcnt vmcnt(0)")
    e("  global_atomic_add v3, v1, v2, s[12:13] sc0")
    e("  s_waitcnt vmcnt(0)")
    e("  v_readfirstlane_b32 s29, v3")
    e("  s_mov_b64 exec, -1")
    e("  s_cmp_lg_u32 s29, 7")
    e("  s_cbranch_scc1 L_end")
    for s in range(8):
        e("  global_load_dwordx4 v[%d:%d], v15, s[14:15] offset:%d sc0 sc1" % (32 + 4 * s, 35 + 4 * s, -4096 + 1024 * s))
    e("  v_and_b32 v14, 15, v0")
    e("  v_lshlrev_b32 v14, 4, v14")
    e("  v_lshrrev_b32 v12, 4, v0")
    e("  v_lshl_add_u32 v14, v12, 2, v14")
    e("  v_add_u32 v14, s19, v14")
    e("  s_waitcnt vmcnt(0)")
    e("  v_max3_f32 v110, v34, v38, v42")
    e("  v_max3_f32 v111, v46, v50, v54")
    e("  v_max3_f32 v110, v110, v58, v62")
    e("  v_max_f32 v110, v110, v111")
    for s in range(8):
        e("  v_sub_f32 v%d, v%d, v110" % (34 + 4 * s, 34 + 4 * s))
    for s in range(8):
        e("  v_exp_f32 v%d, v%d" % (34 + 4 * s, 34 + 4 * s))
    e("  v_mul_f32 v108, v32, v34")
    e("  v_mul_f32 v109, v33, v34")
    e("  v_mul_f32 v111, v35, v34")
    for s in range(1, 8):
        e("  v_fmac_f32 v108, v%d, v%d" % (32 + 4 * s, 34 + 4 * s))
        e("  v_fmac_f32 v109, v%d, v%d" % (33 + 4 * s, 34 + 4 * s))
        e("  v_fmac_f32 v111, v%d, v%d" % (35 + 4 * s, 34 + 4 * s))
    e("  v_rcp_f32 v111, v111")
    e("  s_nop 0")
    e("  v_mul_f32 v108, v108, v111")
    e("  v_mul_f32 v109, v109, v111")
    e("  v_cvt_pk_bf16_f32 v108, v108, v109")
    e("  global_store_dword v14, v108, s[10:11]")
    e("L_end:")
    e("  s_endpgm")
    e('.section .rodata,"a"')
    e(".p2align 6")
    e(".amdhsa_kernel %s_kernel" % NAME)
    e("  .amdhsa_next_free_vgpr 128")
    e("  .amdhsa_next_free_sgpr 32")
    e("  .amdhsa_accum_offset 128")
    e("  .amdhsa_group_segment_fixed_size 0")
    e("  .amdhsa_kernarg_size 48")
    e("  .amdhsa_user_sgpr_count 2")
    e("  .amdhsa_user_sgpr_kernarg_segment_ptr 1")
    e("  .amdhsa_system_sgpr_workgroup_id_x 1")
    e(".end_amdhsa_kernel")
    return "\n".join(L) + "\n"

if __name__ == "__main__":
    out = sys.argv[1]
    nt = "nont" not in sys.argv[2:]
    open(out, "w").write(gen(nt=nt))
```
